```python
import torch

def _softmax(x, axis=-1):
    return torch.softmax(x, dim=axis)
def _gelu(x):
    return torch.nn.functional.gelu(x, approximate="tanh")
def _silu(x):
    return torch.nn.functional.silu(x)
def _sigmoid(x):
    return torch.sigmoid(x)
def _layernorm(x, axis=-1, eps=1e-5):
    m = x.mean(dim=axis, keepdim=True)
    v = x.var(dim=axis, keepdim=True, unbiased=False)
    return (x - m) / torch.sqrt(v + eps)
def _scatter_add(tgt, idx, src, axis=0):
    return tgt.clone().index_add_(axis, idx, src)
def _segment_sum(src, seg, n):
    out = torch.zeros((n,) + src.shape[1:], dtype=src.dtype)
    return out.index_add_(0, seg, src)
def _pad(x, pw):
    flat = tuple(v for pair in reversed(pw) for v in pair)
    return torch.nn.functional.pad(x, flat)

kernel_name = 'sequential_preLN__ssm_conv_h3__mixer_channel_mlp__prompt'

def setup_inputs():

    _w = (lambda a: (lambda t: t.to(torch.bfloat16) if t.is_floating_point() else t)(torch.as_tensor(a)))
    def _A_setup():
        B, S, D = 1, 2048, 448
        ks = 4
        return {
            "q": _w((lambda *s: torch.randn(*s, dtype=torch.bfloat16) * 0.05)(B, S, D)),
            "k": _w((lambda *s: torch.randn(*s, dtype=torch.bfloat16) * 0.2)(B, S, D)),
            "v": _w((lambda *s: torch.randn(*s, dtype=torch.bfloat16) * 0.2)(B, S, D)),
            "shift_k": _w((lambda *s: torch.randn(*s, dtype=torch.bfloat16) * 0.2)(D, ks) * 0.5),
            "ssm_k": _w((lambda *s: torch.randn(*s, dtype=torch.bfloat16) * 0.8)(D, S) * (1.0 / S ** 0.5)),
            "ssm_D": _w((lambda *s: torch.randn(*s, dtype=torch.bfloat16) * 0.2)(D)),
        }
    _A_in = _A_setup()

    def _B_setup():
        B, S, D, F = 1, 2048, 448, 1792
        return {
            "x": _w((lambda *s: torch.randn(*s, dtype=torch.bfloat16) * 0.05)(B, S, D)),
            "w1": _w((lambda *s: torch.randn(*s, dtype=torch.bfloat16) * 0.8)(D, F) * (D ** -0.5)),
            "b1": _w((lambda *s: torch.randn(*s, dtype=torch.bfloat16) * 0.4)(F)),
            "w2": _w((lambda *s: torch.randn(*s, dtype=torch.bfloat16) * 0.05)(F, D) * (F ** -0.5)),
            "b2": _w((lambda *s: torch.randn(*s, dtype=torch.bfloat16) * 0.05)(D)),
        }
    _B_in = _B_setup()

    return {
        "A_q": _A_in["q"],
        "A_k": _A_in["k"],
        "A_v": _A_in["v"],
        "A_shift_k": _A_in["shift_k"],
        "A_ssm_k": _A_in["ssm_k"],
        "A_ssm_D": _A_in["ssm_D"],
        "B_x": _B_in["x"],
        "B_w1": _B_in["w1"],
        "B_b1": _B_in["b1"],
        "B_w2": _B_in["w2"],
        "B_b2": _B_in["b2"],
    }

def reference(A_q, A_k, A_v, A_shift_k, A_ssm_k, A_ssm_D, B_x, B_w1, B_b1, B_w2, B_b2):
    def _A_ref(q, k, v, shift_k, ssm_k, ssm_D):
        B, S, D = q.shape
        ks = shift_k.shape[-1]
        k_pad = _pad(k, ((0, 0), (ks - 1, 0), (0, 0)))
        k_shift = torch.zeros_like(k)
        for t in range(ks):
            k_shift = k_shift + k_pad[:, t:t + S, :] * shift_k[:, ks - 1 - t][None, None, :]
        kv = k_shift * v
        L = 2 * S
        kv_pad = _pad(kv, ((0, 0), (0, S), (0, 0)))
        kf_pad = _pad(ssm_k, ((0, 0), (0, S)))
        kv_f = (lambda x, axes=(-2,-1): torch.fft.rfft2(x.float(), dim=axes))(kv_pad[:, None, :, :], axes=(1, 2))
        kf_f = (lambda x, axes=(-2,-1): torch.fft.rfft2(x.float(), dim=axes))(kf_pad[:, None, :], axes=(1, 2))
        kf_f = (lambda x, *d: x.permute(*d))(kf_f, 1, 2, 0)
        y_f = kv_f * kf_f[None, :, :, :]
        y = (lambda x, s, axes=(-2,-1): torch.fft.irfft2(x, s=s, dim=axes).to(torch.bfloat16))(y_f, (1, L), axes=(1, 2))[:, 0, :S, :]
        y = y + kv * ssm_D[None, None, :]
        return q * y

    def _B_ref(x, w1, b1, w2, b2):
        y = _layernorm(x, axis=-1)
        h = _gelu(torch.einsum("bsd,df->bsf", y, w1) + b1)
        return torch.einsum("bsf,fd->bsd", h, w2) + b2

    x = A_q
    h = x + _A_ref(_layernorm(x, axis=-1), A_k, A_v, A_shift_k, A_ssm_k, A_ssm_D)
    h2 = h + _B_ref(_layernorm(h, axis=-1), B_w1, B_b1, B_w2, B_b2)
    return h2
```

```python
NWG = 224
WS_CNT = 0
WS_KVR = 0x10000
SZ = 448 * 2048 * 2
WS_QT = WS_KVR + SZ
WS_HT = WS_QT + SZ
WS_STATS = WS_HT + SZ
WS_W1F = WS_STATS + 16384
WS_W2F = WS_W1F + 448 * 1792 * 2
WS_HF = WS_W2F + 448 * 1792 * 2
WS_END = WS_HF + 2048 * 1792 * 2
WS_STAMP = 0x2000000
NSTAMP = 24
STAMP_NAMES = {0: "start", 1: "kernarg", 2: "P0 data", 3: "bar1", 4: "S1/SB arrive", 5: "S1 pass", 6: "bar2", 7: "conv done/SBpass",
               8: "bar3", 9: "hT stored", 10: "S2 arrive", 11: "S2 pass", 12: "chunk0", 13: "chunk6", 14: "bar5", 15: "gelu1 done",
               16: "mfma2 done", 17: "gelu2 done", 18: "bar6", 19: "S3 pass", 20: "barX/Y", 21: "gemm2 done", 22: "barZ", 23: "end"}
```

```python
import sys, struct
from layout import *

NAME = "sequential_preLN__ssm_conv_h3__mixer_channel_mlp__prompt"
STAMPS = "--stamps" in sys.argv
STOP = None
for a_ in sys.argv:
    if a_.startswith("--stop="): STOP = a_.split("=")[1]
OUT = [a_ for a_ in sys.argv[1:] if not a_.startswith("--")][0]
SPIN_LIMIT = 0x40000

L = []
def e(s): L.append("    " + s)
def lab(s): L.append(s + ":")
def cm(s): L.append("    ; " + s)
def f2u(x): return struct.unpack("<I", struct.pack("<f", x))[0]
def vr(a, n=1, p="v"): return f"{p}{a}" if n == 1 else f"{p}[{a}:{a+n-1}]"
def ar(a, n=1): return vr(a, n, "a")
_uid = [0]
def uid(p):
    _uid[0] += 1
    return f"{p}_{_uid[0]}"

sQ, sK, sV, sSH, sSK, sSD, sW1, sB1, sW2, sB2, sOUT, sDBG, sWS, sWSRC, sCODE = [8 + 4 * i for i in range(15)]
def srd(r): return f"s[{r}:{r+3}]"
sTT, sCG, sD, sCP, sG, sJ, sT0, sMASK, sSPIN = 68, 69, 70, 72, 73, 74, 75, 76, 77
sST = 78
C_S1, C_S1GO, C_SB1, C_SBGO, C_S21, C_S2GO, C_S3 = 0, 8, 64, 72, 80, 88, 96
KZ, KZ_CH, KZ_E = 0, 8320, 4160
XR, XR_CH = 16640, 4608
EX = 25856
QROW = 42240
HO = 0
KVT = 65536
QTILE = KVT + 10240
WP = QTILE + 8192
LSTAT = WP + 14336
HT = 65536
FIN, FIN_K, FIN_ROW = 65536, 17408, 272
MISC = 135168
STX = MISC + 64
LDS_BYTES = STX + 2048

def stamp(n):
    if not STAMPS: return
    e("s_memrealtime s[4:5]")
    e("s_waitcnt lgkmcnt(0)")
    e(f"s_mov_b32 s{sST+n}, s4")

def barrier():
    e("s_barrier")

def poll(vaddr, vtmp, target, code):
    lp, dn = uid("POLL"), uid("POLLD")
    e(f"s_mov_b32 s{sSPIN}, {SPIN_LIMIT}")
    lab(lp)
    e(f"buffer_load_dword v{vtmp}, v{vaddr}, {srd(sWS)}, 0 offen sc1")
    e("s_waitcnt vmcnt(0)")
    e(f"v_readfirstlane_b32 s{sT0}, v{vtmp}")
    e(f"s_cmp_ge_u32 s{sT0}, {target}")
    e(f"s_cbranch_scc1 {dn}")
    e(f"s_sub_u32 s{sSPIN}, s{sSPIN}, 1")
    e(f"s_cbranch_scc0 {lp}")
    e(f"v_mov_b32 v{vtmp}, {code}")
    e(f"v_mov_b32 v{vaddr}, 4")
    e(f"buffer_store_dword v{vtmp}, v{vaddr}, {srd(sDBG)}, 0 offen")
    lab(dn)

def lds_last(off, n, vA, vB, skip):
    e(f"v_mov_b32 v{vA}, {off}")
    e(f"v_mov_b32 v{vB}, 1")
    e("s_mov_b64 exec, 1")
    e(f"ds_add_rtn_u32 v{vB}, v{vA}, v{vB}")
    e("s_waitcnt lgkmcnt(0)")
    e("s_mov_b64 exec, -1")
    e(f"v_readfirstlane_b32 s{sT0}, v{vB}")
    e(f"s_cmp_lg_u32 s{sT0}, {n-1}")
    e(f"s_cbranch_scc1 {skip}")

def arrive2(c1_line_sgpr_expr, last, go_base_line, vA, vB, go_store):
    sk = uid("ARR")
    e(f"v_mov_b32 v{vA}, s{c1_line_sgpr_expr}")
    e(f"v_mov_b32 v{vB}, 1")
    e("s_mov_b64 exec, 1")
    e(f"buffer_atomic_add v{vB}, v{vA}, {srd(sWS)}, 0 offen sc0 sc1")
    e("s_waitcnt vmcnt(0)")
    e("s_mov_b64 exec, -1")
    e(f"v_readfirstlane_b32 s{sT0}, v{vB}")
    e(f"s_cmp_lg_u32 s{sT0}, {last}")
    e(f"s_cbranch_scc1 {sk}")
    e(f"v_lshlrev_b32 v{vA}, 8, v1")
    e(f"v_add_u32 v{vA}, s{go_base_line}, v{vA}")
    e(f"v_mov_b32 v{vB}, 1")
    e("s_mov_b64 exec, 0xff")
    if go_store:
        e(f"buffer_store_dword v{vB}, v{vA}, {srd(sWS)}, 0 offen sc1")
    else:
        e(f"buffer_atomic_add v{vB}, v{vA}, {srd(sWS)}, 0 offen sc1")
    e("s_mov_b64 exec, -1")
    lab(sk)

def stop_here(name):
    if STOP == name:
        e("s_branch FINISH")

hdr = open("cdna_kernels/" + NAME + ".s.ref").read().split("; Override launch")[0]
L.append(hdr.rstrip())
L.append(f"; @launch grid=({NWG},1,1) block=(512,1,1) lds={LDS_BYTES}")
L.append('.amdgcn_target "amdgcn-amd-amdhsa--gfx950"')
L.append(".text")
L.append(f".globl {NAME}_kernel")
L.append(".p2align 8")
L.append(f".type {NAME}_kernel,@function")
lab(f"{NAME}_kernel")
e(f"s_cmp_ge_u32 s2, {NWG}")
e("s_cbranch_scc1 EXIT")
for r, off in ((sK, 8), (sV, 16), (sSH, 24), (sDBG, 96), (sQ, 0), (sWS, 104), (sSK, 32), (sW1, 56), (sW2, 72), (sSD, 40), (sB1, 64), (sB2, 80), (sOUT, 88)):
    e(f"s_load_dwordx2 s[{r}:{r+1}], s[0:1], {off}")
if STAMPS:
    for i in range(NSTAMP): e(f"s_mov_b32 s{sST+i}, 0")
    e("s_memrealtime s[100:101]")
e("v_lshrrev_b32 v2, 6, v0")
e("v_and_b32 v1, 63, v0")
e("v_readfirstlane_b32 s3, v2")
for r, n in ((sK, SZ), (sV, SZ), (sSH, 3584), (sDBG, 256), (sQ, SZ), (sWS, 0x10000000), (sSK, SZ), (sW1, 1605632), (sW2, 1605632), (sSD, 896), (sB1, 3584), (sB2, 896), (sOUT, SZ)):
    e(f"s_mov_b32 s{r+2}, {n}")
    e(f"s_mov_b32 s{r+3}, 0x20000")
e(f"s_mul_i32 s{sTT}, s2, 9363")
e(f"s_lshr_b32 s{sTT}, s{sTT}, 16")
e(f"s_mul_i32 s{sT0}, s{sTT}, 7")
e(f"s_sub_u32 s{sCG}, s2, s{sT0}")
e(f"s_mov_b32 s{sMASK}, 0xffff0000")
e(f"s_and_b32 s6, s2, 7")
e(f"s_lshr_b32 s7, s2, 3")
e(f"s_mul_i32 s{sCP}, s6, 28")
e(f"s_add_u32 s{sCP}, s{sCP}, s7")
e(f"s_mul_i32 s{sT0}, s7, 9363")
e(f"s_lshr_b32 s{sT0}, s{sT0}, 16")
e(f"s_lshl_b32 s{sG}, s6, 2")
e(f"s_add_u32 s{sG}, s{sG}, s{sT0}")
e(f"s_mul_i32 s{sT0}, s{sT0}, 7")
e(f"s_sub_u32 s{sJ}, s7, s{sT0}")
e("s_cmp_ge_u32 s3, 4")
e("s_cbranch_scc1 AUX0")

cm("P0 critical waves: kv = shiftconv(k) * v for a 64 token x 64 channel tile")
e("v_and_b32 v2, 7, v0")
e("v_lshrrev_b32 v3, 3, v0")
e("v_mul_u32_u24 v4, 1792, v3")
e("v_lshl_add_u32 v4, v2, 4, v4")
e(f"s_mul_i32 s6, s{sTT}, 57344")
e(f"s_lshl_b32 s7, s{sCG}, 7")
e("s_add_u32 s6, s6, s7")
e("v_add_u32 v4, s6, v4")
e("v_subrev_u32 v5, 2688, v4")
e("v_subrev_u32 v6, 1792, v4")
e("v_subrev_u32 v7, 896, v4")
e(f"s_lshl_b32 s7, s{sCG}, 9")
e("v_lshlrev_b32 v8, 6, v2")
e("v_add_u32 v8, s7, v8")
e("v_mov_b32 v9, 0")
e("s_waitcnt lgkmcnt(0)")
if STAMPS: e(f"s_mov_b32 s{sST}, s100"); e("s_mov_b32 s100, 0"); e("s_mov_b32 s101, 0")
for i in range(4): e(f"buffer_load_dwordx4 v[{16+4*i}:{19+4*i}], v8, {srd(sSH)}, 0 offen offset:{16*i}")
e(f"buffer_load_dwordx4 v[32:35], v5, {srd(sK)}, 0 offen")
e(f"buffer_load_dwordx4 v[36:39], v6, {srd(sK)}, 0 offen")
e(f"buffer_load_dwordx4 v[40:43], v7, {srd(sK)}, 0 offen")
e(f"buffer_load_dwordx4 v[44:47], v4, {srd(sK)}, 0 offen")
e(f"buffer_load_dwordx4 v[48:51], v4, {srd(sK)}, 0 offen offset:896")
e(f"buffer_load_dwordx4 v[52:55], v4, {srd(sV)}, 0 offen")
e(f"buffer_load_dwordx4 v[56:59], v4, {srd(sV)}, 0 offen offset:896")
e(f"buffer_load_dword v10, v9, {srd(sDBG)}, 0 offen sc1")
stamp(1)
e("v_mul_u32_u24 v11, 320, v3")
e(f"v_sub_u32 v11, {KVT + 62*160}, v11")
e("v_lshl_add_u32 v11, v2, 4, v11")
e("v_lshrrev_b32 v2, 4, v1")
e("v_bfe_u32 v3, v1, 2, 2")
e("v_lshl_add_u32 v3, v2, 3, v3")
e("v_mul_u32_u24 v12, 160, v3")
e("v_and_b32 v3, 3, v1")
e("v_lshl_add_u32 v12, v3, 3, v12")
e("s_lshl_b32 s6, s3, 5")
e(f"s_add_u32 s6, s6, {KVT}")
e("v_add_u32 v12, s6, v12")
e("v_and_b32 v3, 15, v1")
e("v_lshlrev_b32 v13, 12, v3")
e("v_lshl_add_u32 v13, v2, 4, v13")
e(f"s_lshl_b32 s6, s{sCG}, 18")
e("s_lshl_b32 s7, s3, 16")
e("s_add_u32 s6, s6, s7")
e(f"s_lshl_b32 s7, s{sTT}, 7")
e("s_sub_u32 s6, s6, s7")
e(f"s_add_u32 s6, s6, {WS_KVR + 3968}")
e("v_add_u32 v13, s6, v13")
e("s_waitcnt vmcnt(8)")
for c in range(8):
    cp_, h = c >> 1, c & 1
    e(f"v_lshlrev_b32 v{64 + 2*cp_ + h}, 16, v{16+2*c}")
    e(f"v_and_b32 v{72 + 2*cp_ + h}, s{sMASK}, v{16+2*c}")
    e(f"v_lshlrev_b32 v{80 + 2*cp_ + h}, 16, v{17+2*c}")
    e(f"v_and_b32 v{88 + 2*cp_ + h}, s{sMASK}, v{17+2*c}")
e("s_waitcnt vmcnt(1)")
stamp(2)
for half in range(2):
    sets = [(2*half, 96, 110), (2*half+1, 16, 60)]
    for cp_, u, rr in sets:
        for i in range(7):
            e(f"v_lshlrev_b32 v{u+2*i}, 16, v{32+4*i+cp_}")
            e(f"v_and_b32 v{u+2*i+1}, s{sMASK}, v{32+4*i+cp_}")
    def W(j, cp_): return f"v[{64+8*j+2*cp_}:{65+8*j+2*cp_}]"
    def R(u, i): return f"v[{u+2*i}:{u+2*i+1}]"
    for j in range(4):
        for cp_, u, rr in sets:
            for t in range(2):
                d = f"v[{rr+2*t}:{rr+2*t+1}]"
                if j == 0: e(f"v_pk_mul_f32 {d}, {W(0,cp_)}, {R(u,3+t)}")
                else: e(f"v_pk_fma_f32 {d}, {W(j,cp_)}, {R(u,3+t-j)}, {d}")
    for cp_, u, rr in sets:
        for t in range(2):
            d = f"v[{rr+2*t}:{rr+2*t+1}]"
            e(f"v_pk_mul_f32 {d}, {d}, {R(u,5+t)}")
    for cp_, u, rr in sets:
        for t in range(2):
            e(f"v_cvt_pk_bf16_f32 v{116+4*t+cp_}, v{rr+2*t}, v{rr+2*t+1}")
e("ds_write_b128 v11, v[116:119] offset:160")
e("ds_write_b128 v11, v[120:123]")
cm("wave 0 makes sure the counters have been zeroed")
e("s_cmp_lg_u32 s3, 0")
e("s_cbranch_scc1 C_INIT_OK")
e("s_waitcnt vmcnt(0)")
e(f"s_mov_b32 s{sSPIN}, {SPIN_LIMIT}")
lab("C_INIT_LP")
e(f"v_readfirstlane_b32 s{sT0}, v10")
e(f"s_cmp_lg_u32 s{sT0}, 0")
e("s_cbranch_scc1 C_INIT_OK")
e(f"buffer_load_dword v10, v9, {srd(sDBG)}, 0 offen sc1")
e("s_waitcnt vmcnt(0)")
e(f"s_sub_u32 s{sSPIN}, s{sSPIN}, 1")
e("s_cbranch_scc0 C_INIT_LP")
lab("C_INIT_OK")
e("s_waitcnt lgkmcnt(0)")
barrier()
stamp(3)
for n in range(2):
    for p in range(2):
        e(f"ds_read_b64_tr_b16 v[{16+4*n+2*p}:{17+4*n+2*p}], v12 offset:{5120*n+640*p}")
e("s_waitcnt lgkmcnt(2)")
e(f"buffer_store_dwordx4 v[16:19], v13, {srd(sWS)}, 0 offen sc1")
e("s_waitcnt lgkmcnt(0)")
e(f"buffer_store_dwordx4 v[20:23], v13, {srd(sWS)}, 0 offen offset:64 sc1")
cm("conv addresses while the stores drain: v14..v17 A, v18 B")
e("s_lshr_b32 s6, s3, 1")
e("s_and_b32 s7, s3, 1")
e("v_and_b32 v2, 15, v1")
e("v_lshrrev_b32 v3, 4, v1")
e("v_add_u32 v4, 25, v2")
e("v_lshrrev_b32 v4, 1, v4")
e("v_lshlrev_b32 v5, 2, v3")
e("v_sub_u32 v4, v4, v5")
e("v_lshlrev_b32 v4, 2, v4")
e("v_and_b32 v5, 1, v2")
e(f"v_mul_u32_u24 v5, {KZ_E}, v5")
e("v_add_u32 v4, v4, v5")
e(f"s_mul_i32 s{sT0}, s6, {KZ_CH}")
e("s_lshl_b32 s4, s7, 8")
e(f"s_add_u32 s{sT0}, s{sT0}, s4")
e(f"v_add_u32 v24, s{sT0}, v4")
e("v_add_u32 v25, 1024, v24")
e("v_add_u32 v26, 2048, v24")
e("v_add_u32 v27, 3072, v24")
e("v_lshlrev_b32 v4, 5, v2")
e("v_lshl_add_u32 v4, v3, 4, v4")
e(f"s_mul_i32 s{sT0}, s6, {XR_CH}")
e(f"s_add_u32 s{sT0}, s{sT0}, s4")
e(f"s_add_u32 s{sT0}, s{sT0}, {XR + 2*2056 - 3584}")
e(f"v_sub_u32 v28, s{sT0}, v4")
cm("ssm_D of this wave's channel as an fp32 pair")
e(f"s_lshl_b32 s4, s{sCP}, 2")
e(f"s_load_dword s{sD}, s[{sSD}:{sSD+1}], s4")
e("s_waitcnt vmcnt(0) lgkmcnt(0)")
e(f"s_lshl_b32 s4, s{sD}, 16")
e(f"s_and_b32 s5, s{sD}, s{sMASK}")
e("s_cmp_eq_u32 s6, 0")
e(f"s_cselect_b32 s{sD}, s4, s5")
e(f"s_mov_b32 s{sD+1}, s{sD}")
lds_last(MISC, 4, 2, 3, "C_S1_DONE")
e(f"s_lshl_b32 s6, s{sCG}, 8")
e(f"s_lshl_b32 s7, s{sCG}, 11")
e(f"s_add_u32 s7, s7, {C_S1GO*256}")
arrive2(6, 31, 7, 2, 3, True)
lab("C_S1_DONE")
stamp(4)
e("s_cmp_lg_u32 s3, 0")
e("s_cbranch_scc1 C_BAR2")
e(f"s_lshr_b32 s6, s{sCP}, 5")
e("s_lshl_b32 s6, s6, 3")
e("s_and_b32 s7, s2, 7")
e("s_add_u32 s6, s6, s7")
e("s_lshl_b32 s6, s6, 8")
e(f"s_add_u32 s6, s6, {C_S1GO*256}")
e("v_mov_b32 v2, s6")
e("v_lshlrev_b32 v4, 4, v1")
e(f"s_lshl_b32 s6, s{sCP}, 13")
e(f"s_add_u32 s6, s6, {WS_KVR}")
e("v_add_u32 v4, s6, v4")
e("v_add_u32 v5, 4096, v4")
poll(2, 3, 1, 0x51)
stamp(5)
e(f"s_mov_b32 m0, {XR}")
e("s_nop 0")
for n in range(4): e(f"buffer_load_dwordx4 v4, {srd(sWS)}, 0 offen offset:{1024*n} sc1 lds")
e(f"s_mov_b32 m0, {XR + XR_CH}")
e("s_nop 0")
for n in range(4): e(f"buffer_load_dwordx4 v5, {srd(sWS)}, 0 offen offset:{1024*n} sc1 lds")
e("s_waitcnt vmcnt(0)")
lab("C_BAR2")
barrier()
stamp(6)
stop_here("p0")

cm("long convolution: 4 residue classes x 36 MFMA; A = Toeplitz fragments of ssm_k, B = reversed kv")
ACC = 64
def conv_reads(r, s):
    A0, B0 = 64 * s, 64 * s + 32
    out = []
    for i in range(8):
        out.append(f"ds_read_b128 {ar(B0+4*i,4)}, v28 offset:{3584 - 512*i + 64*r}")
        o = (512 * (i & 1) + 64 * r) // 4
        out.append(f"ds_read2_b32 {ar(A0+4*i,2)}, v{24 + (i>>1)} offset0:{o} offset1:{o+1}")
        out.append(f"ds_read2_b32 {ar(A0+4*i+2,2)}, v{24 + (i>>1)} offset0:{o+2} offset1:{o+3}")
    return out
for x in conv_reads(0, 0): e(x)
for r in range(4):
    s = r & 1
    A0, B0 = 64 * s, 64 * s + 32
    nxt = conv_reads(r + 1, 1 - s) if r < 3 else []
    e("s_waitcnt lgkmcnt(0)")
    for p in range(8):
        for t in range(p, 8):
            c = "0" if (r == 0 and p == 0) else vr(ACC + 4*t, 4)
            e(f"v_mfma_f32_16x16x32_bf16 {vr(ACC+4*t,4)}, {ar(A0+4*p,4)}, {ar(B0+4*(t-p),4)}, {c}")
            if nxt: e(nxt.pop(0))
stamp(7)
cm("exchange partial sums with the partner wave; epilogue addresses")
e("s_and_b32 s7, s3, 1")
e("s_lshr_b32 s6, s3, 1")
e("v_lshlrev_b32 v2, 4, v1")
e("s_lshl_b32 s4, s3, 12")
e(f"s_add_u32 s4, s4, {EX}")
e("v_add_u32 v3, s4, v2")
e("s_xor_b32 s4, s3, 1")
e("s_lshl_b32 s4, s4, 12")
e(f"s_add_u32 s4, s4, {EX}")
e("v_add_u32 v4, s4, v2")
e("s_cmp_eq_u32 s7, 0")
e("s_cbranch_scc0 C_SEND1")
for i in range(4): e(f"ds_write_b128 v3, {vr(ACC+16+4*i,4)} offset:{1024*i}")
e("s_branch C_SENT")
lab("C_SEND1")
for i in range(4): e(f"ds_write_b128 v3, {vr(ACC+4*i,4)} offset:{1024*i}")
for i in range(8): e(f"v_pk_mul_f32 {vr(ACC+2*i,2)}, {vr(ACC+16+2*i,2)}, 1.0 op_sel_hi:[1,0]")
lab("C_SENT")
e("v_and_b32 v5, 15, v1")
e("v_lshrrev_b32 v6, 4, v1")
e("v_lshlrev_b32 v7, 5, v5")
e("v_lshl_add_u32 v7, v6, 3, v7")
e("s_lshl_b32 s4, s7, 11")
e("s_lshl_b32 s5, s6, 12")
e("s_add_u32 s5, s5, s4")
e(f"s_add_u32 s5, s5, {QROW}")
e("v_add_u32 v8, s5, v7")
e(f"s_mul_i32 s5, s6, {XR_CH}")
e("s_sub_u32 s5, s5, s4")
e(f"s_add_u32 s5, s5, {XR + 2*2044 - 1536}")
e("v_sub_u32 v9, s5, v7")
e("s_lshl_b32 s5, s4, 1")
e(f"s_add_u32 s5, s5, {LSTAT}")
e("v_lshl_add_u32 v10, v7, 1, s5")
e("v_and_b32 v11, 1, v6")
e("v_lshlrev_b32 v11, 9, v11")
e("v_lshl_add_u32 v11, v5, 5, v11")
e("v_lshrrev_b32 v12, 1, v6")
e("v_lshl_add_u32 v11, v12, 4, v11")
e(f"s_lshl_b32 s5, s{sCP}, 13")
e("s_add_u32 s5, s5, s4")
e("s_lshl_b32 s4, s6, 12")
e("s_add_u32 s5, s5, s4")
e(f"s_add_u32 s5, s5, {WS_HT}")
e("v_add_u32 v11, s5, v11")
e(f"s_lshl_b32 s4, s{sJ}, 3")
e("s_add_u32 s4, s4, s3")
e("s_mul_i32 s4, s4, 28672")
e(f"s_add_u32 s4, s4, {WS_W1F}")
e("v_add_u32 v13, s4, v2")
e("s_waitcnt lgkmcnt(0)")
barrier()
stamp(8)
P, KVR_, QR, RH, NU = 16, 32, 40, 96, 112
for i in range(4):
    e(f"ds_read_b128 {vr(P+4*i,4)}, v4 offset:{1024*i}")
    e(f"ds_read_b64 {vr(KVR_+2*i,2)}, v9 offset:{1536-512*i}")
    e(f"ds_read_b64 {vr(QR+2*i,2)}, v8 offset:{512*i}")
for i in range(4):
    e(f"ds_read_b128 {vr(RH+4*i,4)}, v10 offset:{1024*i}")
    e(f"ds_read_b128 {vr(NU+4*i,4)}, v10 offset:{8192+1024*i}")
X, Qf, HO_ = 48, 80, 56
e("s_waitcnt lgkmcnt(8)")
for i in range(4):
    e(f"v_pk_add_f32 {vr(ACC+4*i,2)}, {vr(ACC+4*i,2)}, {vr(P+4*i,2)}")
    e(f"v_pk_add_f32 {vr(ACC+4*i+2,2)}, {vr(ACC+4*i+2,2)}, {vr(P+4*i+2,2)}")
    x0 = X + 4 * (i & 1)
    e(f"v_and_b32 v{x0}, s{sMASK}, v{KVR_+2*i+1}")
    e(f"v_lshlrev_b32 v{x0+1}, 16, v{KVR_+2*i+1}")
    e(f"v_and_b32 v{x0+2}, s{sMASK}, v{KVR_+2*i}")
    e(f"v_lshlrev_b32 v{x0+3}, 16, v{KVR_+2*i}")
    e(f"v_lshlrev_b32 v{Qf+4*i}, 16, v{QR+2*i}")
    e(f"v_and_b32 v{Qf+4*i+1}, s{sMASK}, v{QR+2*i}")
    e(f"v_lshlrev_b32 v{Qf+4*i+2}, 16, v{QR+2*i+1}")
    e(f"v_and_b32 v{Qf+4*i+3}, s{sMASK}, v{QR+2*i+1}")
    e(f"v_pk_fma_f32 {vr(ACC+4*i,2)}, {vr(x0,2)}, s[{sD}:{sD+1}], {vr(ACC+4*i,2)}")
    e(f"v_pk_fma_f32 {vr(ACC+4*i+2,2)}, {vr(x0+2,2)}, s[{sD}:{sD+1}], {vr(ACC+4*i+2,2)}")
e("s_waitcnt lgkmcnt(0)")
for i in range(8):
    e(f"v_pk_fma_f32 {vr(RH+2*i,2)}, {vr(Qf+2*i,2)}, {vr(RH+2*i,2)}, {vr(NU+2*i,2)}")
for i in range(8):
    e(f"v_pk_fma_f32 {vr(RH+2*i,2)}, {vr(RH+2*i,2)}, {vr(ACC+2*i,2)}, {vr(Qf+2*i,2)}")
for i in range(8):
    e(f"v_cvt_pk_bf16_f32 v{HO_+i}, v{RH+2*i}, v{RH+2*i+1}")
e("s_nop 1")
for pr in range(2):
    e(f"v_permlane16_swap_b32 v{HO_+4*pr}, v{HO_+4*pr+2}")
    e(f"v_permlane16_swap_b32 v{HO_+4*pr+1}, v{HO_+4*pr+3}")
e(f"buffer_store_dwordx4 {vr(HO_,4)}, v11, {srd(sWS)}, 0 offen sc1")
e(f"buffer_store_dwordx4 {vr(HO_+4,4)}, v11, {srd(sWS)}, 0 offen offset:1024 sc1")
def w1_loads(vo):
    e("s_mov_b32 s4, 0")
    for ks in range(28):
        if ks and ks % 4 == 0: e("s_add_u32 s4, s4, 4096")
        e(f"buffer_load_dwordx4 {ar(4*ks,4)}, v{vo}, {srd(sWS)}, s4 offen offset:{1024*(ks%4)} sc1")
w1_loads(13)
e("s_waitcnt vmcnt(28)")
stamp(9)
barrier()
e("s_branch S2_COMMON")

lab("AUX0")
cm("auxiliary waves: q transpose, weight re-layout, ssm_k copies, LN statistics of q")
e("s_sub_u32 s7, s3, 4")
e("v_and_b32 v2, 7, v1")
e("v_lshrrev_b32 v3, 3, v1")
e("v_mul_u32_u24 v4, 896, v3")
e("v_lshl_add_u32 v4, v2, 4, v4")
e(f"s_lshl_b32 s4, s{sTT}, 2")
e("s_add_u32 s4, s4, s7")
e("s_mul_i32 s4, s4, 14336")
e(f"s_lshl_b32 s5, s{sCG}, 7")
e("s_add_u32 s4, s4, s5")
e("v_add_u32 v4, s4, v4")
e("v_add_u32 v5, 7168, v4")
e("s_cmp_lt_u32 s2, 112")
e("s_movk_i32 s6, 896")
e("s_cselect_b32 s6, 3584, s6")
e("v_mul_lo_u32 v6, s6, v3")
e("v_lshl_add_u32 v6, v2, 4, v6")
cm("stats rows offset v8, kern offset v9, code prefetch offset v10")
e("v_mul_u32_u24 v8, 896, v3")
e("v_lshl_add_u32 v8, v2, 4, v8")
e("s_add_u32 s4, s2, 224")
e("s_cmp_eq_u32 s7, 0")
e("s_cselect_b32 s4, s2, s4")
e("s_mul_i32 s5, s4, 7168")
e("s_cmp_lt_u32 s4, 256")
e("s_cselect_b32 s5, s5, 0x40000000")
e("s_cmp_lt_u32 s7, 2")
e("s_cselect_b32 s5, s5, 0x40000000")
e("v_add_u32 v8, s5, v8")
e("v_subrev_u32 v9, 256, v0")
e("v_lshlrev_b32 v10, 7, v9")
e("v_lshlrev_b32 v9, 4, v9")
e(f"s_lshl_b32 s5, s{sCP}, 13")
e("v_add_u32 v11, s5, v9")
e("v_add_u32 v12, 4096, v11")
e(f"s_getpc_b64 s[{sCODE}:{sCODE+1}]")
lab("PCBASE")
e(f"s_mov_b32 s{sCODE+2}, CODE_END-PCBASE")
e(f"s_mov_b32 s{sCODE+3}, 0x20000")
e("s_waitcnt lgkmcnt(0)")
if STAMPS: e(f"s_mov_b32 s{sST}, s100"); e("s_mov_b32 s100, 0"); e("s_mov_b32 s101, 0")
cm("WG 0 wave 7 zeroes the hand-off counters")
e("s_cmp_eq_u32 s2, 0")
e("s_cselect_b32 s4, s3, 0")
e("s_cmp_eq_u32 s4, 7")
e("s_cbranch_scc0 A_NOZ")
e("v_lshlrev_b32 v13, 8, v1")
e("v_mov_b32 v14, 0")
e(f"buffer_store_dword v14, v13, {srd(sWS)}, 0 offen sc1")
e("v_add_u32 v13, 16384, v13")
e(f"buffer_store_dword v14, v13, {srd(sWS)}, 0 offen sc1")
lab("A_NOZ")
e("s_lshl_b32 s4, s7, 11")
e(f"s_add_u32 s4, s4, {QTILE}")
e("s_mov_b32 m0, s4")
e("s_add_u32 s4, s4, 1024")
e(f"buffer_load_dwordx4 v4, {srd(sQ)}, 0 offen lds")
e("s_mov_b32 m0, s4")
e("s_cmp_lt_u32 s2, 112")
e(f"buffer_load_dwordx4 v5, {srd(sQ)}, 0 offen lds")
e(f"s_cselect_b32 s{sWSRC}, s{sW1}, s{sW2}")
e(f"s_cselect_b32 s{sWSRC+1}, s{sW1+1}, s{sW2+1}")
e(f"s_mov_b32 s{sWSRC+2}, 1605632")
e(f"s_mov_b32 s{sWSRC+3}, 0x20000")
e("s_cbranch_scc0 A_W2DEC")
e("s_lshr_b32 s4, s2, 2")
e("s_and_b32 s5, s2, 3")
e(f"s_mul_i32 s{sT0}, s5, {112*3584}")
e("s_lshl_b32 vcc_lo, s4, 7")
e(f"s_add_u32 s{sT0}, s{sT0}, vcc_lo")
e("s_mul_i32 s4, s4, 56")
e("s_mul_i32 s5, s5, 7")
e("s_add_u32 s4, s4, s5")
e("s_lshl_b32 s4, s4, 10")
e(f"s_add_u32 vcc_lo, s4, {WS_W1F}")
e("s_mov_b32 vcc_hi, 1024")
e("s_mov_b32 s5, 28672")
e("s_branch A_WDEC")
lab("A_W2DEC")
e("s_sub_u32 s5, s2, 112")
e("s_lshr_b32 s4, s5, 4")
e("s_and_b32 s5, s5, 15")
e(f"s_mul_i32 s{sT0}, s5, {112*896}")
e("s_lshl_b32 vcc_lo, s4, 7")
e(f"s_add_u32 s{sT0}, s{sT0}, vcc_lo")
e("s_mul_i32 s4, s4, 112")
e("s_mul_i32 s5, s5, 7")
e("s_add_u32 s4, s4, s5")
e("s_lshl_b32 s4, s4, 11")
e(f"s_add_u32 vcc_lo, s4, {WS_W2F}")
e("s_mov_b32 vcc_hi, 2048")
e("s_mov_b32 s5, 1024")
lab("A_WDEC")
e("s_add_u32 s4, s7, 4")
e("s_cmp_lt_u32 s4, 7")
e(f"s_cselect_b32 s{sSPIN}, s4, s7")
e("s_mul_i32 s4, s7, vcc_hi")
e("s_add_u32 s4, s4, vcc_lo")
e("v_lshl_add_u32 v16, v1, 4, s4")
e("v_add_u32 v17, s5, v16")
e(f"s_mul_i32 s4, s{sSPIN}, vcc_hi")
e("s_add_u32 s4, s4, vcc_lo")
e("v_lshl_add_u32 v18, v1, 4, s4")
e("v_add_u32 v19, s5, v18")
for which in ("s7", f"s{sSPIN}"):
    e(f"s_mul_i32 s4, {which}, s6")
    e("s_lshl_b32 s4, s4, 4")
    e(f"s_add_u32 s4, s4, s{sT0}")
    e(f"s_lshl_b32 s5, {which}, 11")
    e(f"s_add_u32 s5, s5, {WP}")
    e("s_mov_b32 m0, s5")
    e("s_add_u32 s5, s5, 1024")
    e(f"buffer_load_dwordx4 v6, {srd(sWSRC)}, s4 offen lds")
    e("s_lshl_b32 vcc_lo, s6, 3")
    e("s_add_u32 s4, s4, vcc_lo")
    e("s_mov_b32 m0, s5")
    e("s_nop 0")
    e(f"buffer_load_dwordx4 v6, {srd(sWSRC)}, s4 offen lds")
e(f"buffer_load_dwordx4 v[32:35], v11, {srd(sSK)}, 0 offen")
e(f"buffer_load_dword v36, v11, {srd(sSK)}, 0 offen offset:16")
e(f"buffer_load_dwordx4 v[40:43], v12, {srd(sSK)}, 0 offen")
e(f"buffer_load_dword v44, v12, {srd(sSK)}, 0 offen offset:16")
for i in range(7): e(f"buffer_load_dwordx4 v[{64+4*i}:{67+4*i}], v8, {srd(sQ)}, 0 offen offset:{128*i}")
e(f"buffer_load_dword v15, v10, {srd(sCODE)}, 0 offen")
NY = 4 + 4 + 7 + 1
stamp(1)
cm("LDS zero fill: kv pads (wave 4), ssm_k heads and counters (wave 5)")
e("v_mov_b32 v52, 0"); e("v_mov_b32 v53, 0"); e("v_mov_b32 v54, 0"); e("v_mov_b32 v55, 0")
e("s_cmp_eq_u32 s7, 0")
e("s_cbranch_scc0 A_Z1")
e("v_and_b32 v13, 31, v1")
e("v_lshlrev_b32 v13, 4, v13")
e("v_lshrrev_b32 v14, 5, v1")
e(f"v_mul_u32_u24 v14, {XR_CH}, v14")
e("v_add_u32 v13, v13, v14")
e(f"v_add_u32 v13, {XR+4096}, v13")
e("ds_write_b128 v13, v[52:55]")
lab("A_Z1")
e("s_cmp_eq_u32 s7, 1")
e("s_cbranch_scc0 A_Z2")
e("v_lshrrev_b32 v13, 1, v1")
e(f"v_mul_u32_u24 v13, {KZ_E}, v13")
e("v_and_b32 v14, 1, v1")
e("v_lshl_add_u32 v13, v14, 4, v13")
e(f"v_mov_b32 v14, {MISC}")
e("v_cmp_gt_u32 vcc, 8, v1")
e("s_nop 1")
e("v_cndmask_b32 v13, v14, v13, vcc")
e("ds_write_b128 v13, v[52:55]")
lab("A_Z2")
cm("tr-read addresses: v20 q tile, v21 q store offset, v22/v23 weight block")
e("v_lshrrev_b32 v2, 4, v1")
e("v_bfe_u32 v3, v1, 2, 2")
e("v_and_b32 v7, 3, v1")
e("v_lshl_add_u32 v13, v2, 3, v3")
e("v_lshlrev_b32 v20, 7, v13")
e("v_lshl_add_u32 v20, v7, 3, v20")
e("s_lshl_b32 s4, s7, 5")
e(f"s_add_u32 s4, s4, {QTILE}")
e("v_add_u32 v20, s4, v20")
e("v_and_b32 v13, 15, v1")
e("v_lshlrev_b32 v21, 12, v13")
e("v_lshl_add_u32 v21, v2, 4, v21")
e(f"s_lshl_b32 s4, s{sCG}, 18")
e("s_lshl_b32 s5, s7, 16")
e("s_add_u32 s4, s4, s5")
e(f"s_lshl_b32 s5, s{sTT}, 7")
e("s_add_u32 s4, s4, s5")
e(f"s_add_u32 s4, s4, {WS_QT}")
e("v_add_u32 v21, s4, v21")
e("s_cmp_lt_u32 s2, 112")
e("s_movk_i32 s4, 512")
e("s_movk_i32 s5, 1024")
e("s_cselect_b32 s4, 1024, s4")
e("s_cselect_b32 s5, 512, s5")
e("v_lshrrev_b32 v13, 5, v1")
e("v_mul_lo_u32 v22, s4, v13")
e("v_lshl_add_u32 v22, v3, 7, v22")
e("v_and_b32 v13, 1, v2")
e("v_lshl_add_u32 v22, v13, 5, v22")
e("v_lshl_add_u32 v22, v7, 3, v22")
e("s_lshl_b32 s4, s7, 11")
e(f"s_add_u32 s4, s4, {WP}")
e(f"s_lshl_b32 s6, s{sSPIN}, 11")
e(f"s_add_u32 s6, s6, {WP}")
e("v_add_u32 v24, s6, v22")
e("v_add_u32 v22, s4, v22")
e("v_add_u32 v23, s5, v22")
e("v_add_u32 v25, s5, v24")
e("s_cmp_eq_u32 s2, 0")
e("s_cselect_b32 s4, s3, 0")
e("s_cmp_eq_u32 s4, 7")
e("s_cbranch_scc0 A_NOFLAG")
e(f"s_waitcnt vmcnt({NY+2})")
e("v_mov_b32 v13, 0")
e("v_mov_b32 v14, 1")
e("s_mov_b64 exec, 1")
e(f"buffer_store_dword v14, v13, {srd(sDBG)}, 0 offen sc1")
e("s_mov_b64 exec, -1")
e("s_waitcnt vmcnt(0)")
lab("A_NOFLAG")
e(f"s_waitcnt vmcnt({NY}) lgkmcnt(0)")
barrier()
stamp(3)
for n in range(2):
    for p in range(2):
        e(f"ds_read_b64_tr_b16 v[{48+4*n+2*p}:{49+4*n+2*p}], v20 offset:{4096*n+512*p}")
e(f"s_waitcnt vmcnt({NY-4})")
for k2, (va, vb) in enumerate(((22, 23), (24, 25))):
    for ct in range(2):
        d = 96 + 8 * k2 + 4 * ct
        e(f"ds_read_b64_tr_b16 v[{d}:{d+1}], v{va} offset:{64*ct}")
        e(f"ds_read_b64_tr_b16 v[{d+2}:{d+3}], v{vb} offset:{64*ct}")
e("s_waitcnt lgkmcnt(8)")
e(f"buffer_store_dwordx4 v[48:51], v21, {srd(sWS)}, 0 offen sc1")
e(f"buffer_store_dwordx4 v[52:55], v21, {srd(sWS)}, 0 offen offset:64 sc1")
e("s_waitcnt lgkmcnt(0)")
for i in range(4):
    e(f"buffer_store_dwordx4 v[{96+4*i}:{99+4*i}], v{16+i}, {srd(sWS)}, 0 offen sc1")
cm("ssm_k copies (even / odd alignment)")
e("s_waitcnt vmcnt(14)")
e(f"v_add_u32 v9, {KZ+32}, v9")
for ch, b0 in ((0, 32), (1, 40)):
    e(f"ds_write_b128 v9, v[{b0}:{b0+3}] offset:{ch*KZ_CH+KZ_E}")
    d = 56 + 4 * ch
    for i in range(4): e(f"v_alignbit_b32 v{d+i}, v{b0+i+1}, v{b0+i}, 16")
    e(f"ds_write_b128 v9, v[{d}:{d+3}] offset:{ch*KZ_CH}")
e("s_cmp_eq_u32 s7, 0")
e("s_cbranch_scc0 A_NOHEAD")
e("v_lshlrev_b32 v13, 16, v32")
e("v_lshlrev_b32 v14, 16, v40")
e(f"v_mov_b32 v2, {KZ+28}")
e("s_mov_b64 exec, 1")
e("ds_write_b32 v2, v13")
e(f"ds_write_b32 v2, v14 offset:{KZ_CH}")
e("s_mov_b64 exec, -1")
lab("A_NOHEAD")
cm("LN statistics of q (waves 4, 5)")
e("s_cmp_lt_u32 s7, 2")
e("s_cbranch_scc0 A_NOSTAT")
e("s_waitcnt vmcnt(7)")
e("s_mov_b32 s4, 0x3f803f80")
for i in range(4): e(f"v_mov_b32 v{26+i}, 0")
for i in range(28):
    e(f"v_dot2_f32_bf16 v{26+(i&1)}, v{64+i}, s4, v{26+(i&1)}")
    e(f"v_dot2_f32_bf16 v{28+(i&1)}, v{64+i}, v{64+i}, v{28+(i&1)}")
e("s_nop 2")
e("v_add_f32 v26, v26, v27")
e("v_add_f32 v28, v28, v29")
for ctl in ("quad_perm:[1,0,3,2]", "quad_perm:[2,3,0,1]", "row_half_mirror"):
    e("s_nop 1")
    e(f"v_add_f32_dpp v26, v26, v26 {ctl} row_mask:0xf bank_mask:0xf")
    e(f"v_add_f32_dpp v28, v28, v28 {ctl} row_mask:0xf bank_mask:0xf")
e(f"v_mul_f32 v26, {hex(f2u(1/448))}, v26")
e(f"v_mul_f32 v28, {hex(f2u(1/448))}, v28")
e("v_fma_f32 v28, -v26, v26, v28")
e("v_max_f32 v28, 0, v28")
e(f"v_add_f32 v28, {hex(f2u(1e-5))}, v28")
e("v_rsq_f32 v28, v28")
e("s_add_u32 s4, s2, 224")
e("s_cmp_eq_u32 s7, 0")
e("s_cselect_b32 s4, s2, s4")
e("v_mul_f32 v26, v26, v28")
e("v_sub_f32 v26, 0, v26")
e("s_cmp_lt_u32 s4, 256")
e("s_cbranch_scc0 A_NOSTAT")
e("s_lshl_b32 s4, s4, 5")
e(f"s_add_u32 s4, s4, {WS_STATS}")
e("v_lshrrev_b32 v2, 3, v1")
e("v_lshl_add_u32 v2, v2, 2, s4")
e("v_add_u32 v3, 8192, v2")
e("s_mov_b32 exec_lo, 0x01010101")
e("s_mov_b32 exec_hi, 0x01010101")
e(f"buffer_store_dword v28, v2, {srd(sWS)}, 0 offen sc1")
e(f"buffer_store_dword v26, v3, {srd(sWS)}, 0 offen sc1")
e("s_mov_b64 exec, -1")
lab("A_NOSTAT")
e("s_waitcnt vmcnt(0) lgkmcnt(0)")
lds_last(MISC + 4, 4, 2, 3, "A_SB_DONE")
e("s_and_b32 s6, s2, 7")
e("s_lshl_b32 s6, s6, 8")
e(f"s_add_u32 s6, s6, {C_SB1*256}")
e(f"s_mov_b32 s7, {C_SBGO*256}")
arrive2(6, 27, 7, 2, 3, False)
lab("A_SB_DONE")
stamp(4)
barrier()
stamp(6)
stop_here("p0")
cm("wait for q^T / statistics / weight fragments of all workgroups, stage them")
e("s_and_b32 s6, s2, 7")
e("s_lshl_b32 s6, s6, 8")
e(f"s_add_u32 s6, s6, {C_SBGO*256}")
e("v_mov_b32 v2, s6")
e("s_sub_u32 s7, s3, 4")
e("v_lshlrev_b32 v4, 4, v1")
e(f"s_lshl_b32 s6, s{sCP}, 13")
e("s_lshl_b32 s4, s7, 11")
e("s_add_u32 s6, s6, s4")
e(f"s_add_u32 s6, s6, {WS_QT}")
e("v_add_u32 v5, s6, v4")
e("s_lshl_b32 s6, s7, 12")
e(f"s_add_u32 s6, s6, {WS_STATS}")
e("v_add_u32 v6, s6, v4")
e(f"s_lshl_b32 s6, s{sJ}, 3")
e("s_add_u32 s6, s6, s3")
e("s_mul_i32 s6, s6, 28672")
e(f"s_add_u32 s6, s6, {WS_W1F}")
e("v_add_u32 v13, s6, v4")
poll(2, 3, 8, 0x5b)
stamp(7)
e("s_lshl_b32 s4, s7, 11")
e(f"s_add_u32 s4, s4, {QROW}")
e("s_mov_b32 m0, s4")
e("s_lshl_b32 s6, s7, 12")
for n in range(2): e(f"buffer_load_dwordx4 v5, {srd(sWS)}, 0 offen offset:{1024*n} sc1 lds")
e(f"s_add_u32 s6, s6, {LSTAT}")
e("s_mov_b32 m0, s6")
e("s_nop 0")
for n in range(4): e(f"buffer_load_dwordx4 v6, {srd(sWS)}, 0 offen offset:{1024*n} sc1 lds")
w1_loads(13)
e("s_waitcnt vmcnt(28)")
barrier()
stamp(8)
barrier()
e("s_cmp_eq_u32 s3, 4")
e("s_cbranch_scc0 S2_COMMON")
e("s_and_b32 s6, s2, 7")
e("s_lshl_b32 s6, s6, 8")
e(f"s_add_u32 s6, s6, {C_S21*256}")
e(f"s_mov_b32 s7, {C_S2GO*256}")
arrive2(6, 27, 7, 2, 3, False)
stamp(10)

lab("S2_COMMON")
cm("column sums of W1 and b1 -> extra A fragment; GEMM1 addresses")
e("v_and_b32 v2, 31, v1")
e(f"s_lshl_b32 s4, s{sJ}, 9")
e("s_lshl_b32 s5, s3, 6")
e("s_add_u32 s4, s4, s5")
e("v_lshl_add_u32 v2, v2, 1, s4")
e(f"buffer_load_ushort v7, v2, {srd(sB1)}, 0 offen")
e("v_mov_b32 v74, 0x3f803f80")
e("v_mov_b32 v75, 0x3f803f80")
e("v_lshrrev_b32 v5, 3, v1")
e("v_lshlrev_b32 v5, 12, v5")
e("v_and_b32 v6, 7, v1")
e("v_bfe_u32 v4, v1, 4, 1")
e("v_lshlrev_b32 v4, 2, v4")
e("v_xor_b32 v6, v6, v4")
e("v_lshl_add_u32 v5, v6, 4, v5")
e("s_lshl_b32 s4, s3, 15")
e(f"s_lshl_b32 s5, s{sG}, 7")
e("s_add_u32 s4, s4, s5")
e(f"s_add_u32 s4, s4, {WS_HT}")
e("v_add_u32 v5, s4, v5")
e("v_lshrrev_b32 v2, 5, v1")
e("v_bfe_u32 v3, v1, 2, 2")
e("v_lshl_add_u32 v2, v2, 3, v3")
e("v_lshlrev_b32 v2, 7, v2")
e("v_lshrrev_b32 v3, 1, v3")
e("v_lshl_add_u32 v2, v3, 6, v2")
e("v_bfe_u32 v3, v1, 4, 1")
e("v_lshl_add_u32 v2, v3, 5, v2")
e("v_and_b32 v3, 3, v1")
e("v_lshl_add_u32 v2, v3, 3, v2")
e(f"v_add_u32 v2, {HT}, v2")
e("v_xor_b32 v3, 64, v2")
e(f"s_mul_i32 s4, s{sG}, 112")
e(f"s_lshl_b32 s5, s{sJ}, 4")
e("s_add_u32 s4, s4, s5")
e("s_lshl_b32 s5, s3, 1")
e("s_add_u32 s4, s4, s5")
e("s_lshl_b32 s4, s4, 11")
e(f"s_add_u32 s4, s4, {WS_HF}")
e("v_lshl_add_u32 v4, v1, 4, s4")
e(f"s_mul_i32 s4, s{sJ}, 112")
e("s_mul_i32 s5, s3, 14")
e("s_add_u32 s4, s4, s5")
e("s_lshl_b32 s4, s4, 11")
e(f"s_add_u32 s4, s4, {WS_W2F}")
e("v_lshl_add_u32 v6, v1, 4, s4")
e("s_waitcnt vmcnt(0)")
for i in range(56):
    acc = vr(8 + 4 * (i & 3), 4)
    e(f"v_mfma_f32_4x4x4_16b_bf16 {acc}, v[74:75], {ar(2*i,2)}, {'0' if i < 4 else acc}")
e("s_nop 7")
e("v_add_f32 v8, v8, v12")
e("v_add_f32 v16, v16, v20")
e("v_add_f32 v8, v8, v16")
e("v_mov_b32 v9, v8")
e("s_nop 1")
e("v_permlane32_swap_b32 v8, v9")
e("v_add_f32 v8, v8, v9")
e("v_cvt_pk_bf16_f32 v9, v8, v8")
e("v_lshlrev_b32 v9, 16, v9")
e("v_sub_f32 v9, v8, v9")
e("v_cvt_pk_bf16_f32 v56, v8, v9")
e("v_and_b32 v57, 0xffff, v56")
e("v_lshl_or_b32 v57, v7, 16, v57")
e("v_cmp_gt_u32 vcc, 32, v1")
e("v_mov_b32 v59, 0")
e("v_mov_b32 v63, 0")
e("v_cndmask_b32 v56, 0, v56, vcc")
e("v_cndmask_b32 v57, 0, v57, vcc")
e("v_cndmask_b32 v58, 0, v7, vcc")
e("v_mov_b32 v67, 0")
e("s_cmp_eq_u32 s3, 4")
e("s_cbranch_scc0 S2_WAIT")
e("s_and_b32 s6, s2, 7")
e("s_lshl_b32 s6, s6, 8")
e(f"s_add_u32 s6, s6, {C_S2GO*256}")
e("v_mov_b32 v8, s6")
poll(8, 9, 8, 0x52)
lab("S2_WAIT")
barrier()
stamp(11)
stop_here("p1")

cm("GEMM1: h^T tile (448 x 64 tokens) into LDS, 7 chunks of 64 channels")
e("s_lshl_b32 s4, s3, 10")
e(f"s_add_u32 s4, s4, {HT}")
e("s_mov_b32 s5, 0")
for i in range(7):
    e("s_mov_b32 m0, s4")
    if i < 6: e("s_add_u32 s4, s4, 8192")
    else: e("s_nop 0")
    e(f"buffer_load_dwordx4 v5, {srd(sWS)}, s5 offen sc1 lds")
    if i < 6: e("s_add_u32 s5, s5, 0x40000")
def w2reg(ks, ct):
    i = 2 * ks + ct
    if i < 4: return ar(112 + 4 * i, 4)
    if i < 14: return vr(88 + 4 * (i - 4), 4)
    return ar(4 * (i - 14), 4)
def w2_loads(lo, hi):
    for i in range(lo, hi):
        if i == lo or i % 4 == 0: e(f"s_mov_b32 s4, {4096*(i//4)}")
        e(f"buffer_load_dwordx4 {w2reg(i>>1, i&1)}, v6, {srd(sWS)}, s4 offen offset:{1024*(i%4)} sc1")
w2_loads(0, 14)
RING = 24
def bfrag_reads(slot, tile, ks):
    d = RING + 4 * slot
    return [f"ds_read_b64_tr_b16 {vr(d,2)}, v{2+tile} offset:{2048*ks}", f"ds_read_b64_tr_b16 {vr(d+2,2)}, v{2+tile} offset:{2048*ks+512}"]
G1ACC = 8
e("s_cmp_ge_u32 s3, 4")
e("s_cbranch_scc1 G1_B")
for c in range(7):
    e(f"s_waitcnt vmcnt({6-c+14})")
    barrier()
    if c == 0: stamp(12)
    if c == 6: stamp(13)
    for i in range(4):
        for x in bfrag_reads(4 * (c & 1) + i, 0, 4 * c + i): e(x)
    if c > 0:
        pass
    for i in range(4):
        ks = 4 * c + i
        e(f"s_waitcnt lgkmcnt({6-2*i})")
        e(f"v_mfma_f32_32x32x16_bf16 {vr(G1ACC,16)}, {ar(4*ks,4)}, {vr(RING+4*(4*(c&1)+i),4)}, {'0' if ks == 0 else vr(G1ACC,16)}")
barrier()
stamp(14)
def stats_consts():
    e(f"v_lshlrev_b32 v76, 3, v1")
    e(f"v_add_u32 v76, {STX}, v76")
    for i in range(4): e(f"ds_read_b64 {vr(78+2*i,2)}, v76 offset:{512*i}")
    e("s_waitcnt lgkmcnt(2)")
    e("v_add_f32 v78, v78, v80"); e("v_add_f32 v79, v79, v81")
    e("s_waitcnt lgkmcnt(0)")
    e("v_add_f32 v82, v82, v84"); e("v_add_f32 v83, v83, v85")
    e("v_add_f32 v78, v78, v82"); e("v_add_f32 v79, v79, v83")
    e(f"v_mul_f32 v78, {hex(f2u(-1/448))}, v78")
    e(f"v_mul_f32 v79, {hex(f2u(1/448))}, v79")
    e("v_fma_f32 v79, -v78, v78, v79")
    e("v_max_f32 v79, 0, v79")
    e(f"v_add_f32 v80, {hex(f2u(1e-5))}, v79")
    e("v_rsq_f32 v80, v80")
    e("v_cvt_pk_bf16_f32 v60, v78, v78")
    e("v_mul_f32 v79, v79, v80")
    e("v_mul_f32 v79, v79, v80")
    e(f"v_add_f32 v79, {hex(f2u(1e-5))}, v79")
    e("v_rsq_f32 v79, v79")
    e("v_lshlrev_b32 v81, 16, v60")
    e("v_mul_f32 v79, v79, v80")
    e("v_rcp_f32 v72, v79")
    e("v_sub_f32 v81, v78, v81")
    e(f"v_mul_f32 v68, {hex(f2u(-2.302208198))}, v79")
    e("v_mul_f32 v80, v79, v79")
    e(f"v_mul_f32 v80, {hex(f2u(0.044715))}, v80")
    e("v_mul_f32 v70, v68, v80")
    e("v_cvt_pk_bf16_f32 v61, v81, v72")
    e(f"v_and_b32 v80, s{sMASK}, v61")
    e("v_sub_f32 v80, v72, v80")
    e("v_cvt_pk_bf16_f32 v62, v80, 0")
    e("v_mov_b32 v69, v68"); e("v_mov_b32 v71, v70"); e("v_mov_b32 v73, v72")
    e("v_mov_b32 v64, v60"); e("v_mov_b32 v65, v61"); e("v_mov_b32 v66, v62")
    e("s_nop 1")
    for a_, b_ in ((68, 69), (70, 71), (72, 73), (60, 64), (61, 65), (62, 66)):
        e(f"v_permlane32_swap_b32 v{a_}, v{b_}")
def tile_mfma(tile):
    pend = []
    for ks in range(4):
        for x in bfrag_reads(ks, tile, ks): e(x)
    for ks in range(28):
        if ks + 4 < 28:
            for x in bfrag_reads((ks + 4) % 8, tile, ks + 4): e(x)
            e("s_waitcnt lgkmcnt(8)")
        else:
            e(f"s_waitcnt lgkmcnt({2*(27-ks)})")
        e(f"v_mfma_f32_32x32x16_bf16 {vr(G1ACC,16)}, {ar(4*ks,4)}, {vr(RING+4*(ks%8),4)}, {'0' if ks == 0 else vr(G1ACC,16)}")
def gelu(tile, packed):
    K1, K2, SG = 68 + tile, 70 + tile, 72 + tile
    e("s_nop 1")
    e(f"v_mfma_f32_32x32x16_bf16 {vr(G1ACC,16)}, v[56:59], {vr(60+4*tile,4)}, {vr(G1ACC,16)}")
    T, O = 24, 40
    if packed:
        e(f"v_mov_b32 v76, v{K1}"); e(f"v_mov_b32 v77, v{K1}"); e(f"v_mov_b32 v78, v{K2}"); e(f"v_mov_b32 v79, v{K2}")
        e(f"v_mov_b32 v80, v{SG}"); e(f"v_mov_b32 v81, v{SG}")
        e("s_nop 5")
    else:
        e("s_nop 11")
    for g4 in range(4):
        a = G1ACC + 4 * g4
        t = T + 4 * (g4 & 1)
        if packed:
            for h in (0, 2): e(f"v_pk_mul_f32 {vr(t+h,2)}, {vr(a+h,2)}, {vr(a+h,2)}")
            for h in (0, 2): e(f"v_pk_fma_f32 {vr(t+h,2)}, {vr(t+h,2)}, v[78:79], v[76:77]")
            for h in (0, 2): e(f"v_pk_mul_f32 {vr(t+h,2)}, {vr(t+h,2)}, {vr(a+h,2)}")
            for h in range(4): e(f"v_exp_f32 v{t+h}, v{t+h}")
            for h in (0, 2): e(f"v_pk_fma_f32 {vr(t+h,2)}, {vr(t+h,2)}, v[80:81], v[80:81]")
            for h in range(4): e(f"v_rcp_f32 v{t+h}, v{t+h}")
            for h in (0, 2): e(f"v_pk_mul_f32 {vr(t+h,2)}, {vr(t+h,2)}, {vr(a+h,2)}")
        else:
            for h in range(4): e(f"v_mul_f32 v{t+h}, v{a+h}, v{a+h}")
            for h in range(4): e(f"v_fma_f32 v{t+h}, v{t+h}, v{K2}, v{K1}")
            for h in range(4): e(f"v_mul_f32 v{t+h}, v{t+h}, v{a+h}")
            for h in range(4): e(f"v_exp_f32 v{t+h}, v{t+h}")
            for h in range(4): e(f"v_fma_f32 v{t+h}, v{t+h}, v{SG}, v{SG}")
            for h in range(4): e(f"v_rcp_f32 v{t+h}, v{t+h}")
            for h in range(4): e(f"v_mul_f32 v{t+h}, v{t+h}, v{a+h}")
        e(f"v_cvt_pk_bf16_f32 v{O+2*g4}, v{t}, v{t+1}")
        e(f"v_cvt_pk_bf16_f32 v{O+2*g4+1}, v{t+2}, v{t+3}")
        if g4 & 1:
            e(f"buffer_store_dwordx4 {vr(O+4*(g4>>1),4)}, v4, {srd(sWS)}, 0 offen offset:{2048*(g4>>1)+1024*tile} sc1")
stats_consts()
gelu(0, False)
stamp(15)
tile_mfma(1)
stamp(16)
gelu(1, False)
stamp(17)
cm("A waves: b2, second half of W2, accumulator = residual h + b2")
e("v_and_b32 v24, 31, v1")
e(f"s_lshl_b32 s4, s{sJ}, 7")
e("v_lshl_add_u32 v24, v24, 1, s4")
e(f"buffer_load_ushort v25, v24, {srd(sB2)}, 0 offen")
e(f"buffer_load_ushort v26, v24, {srd(sB2)}, 0 offen offset:64")
w2_loads(14, 28)
e(f"s_lshl_b32 s4, s{sJ}, 13")
e("s_lshl_b32 s5, s3, 11")
e("s_add_u32 s4, s4, s5")
e("v_add_u32 v27, s4, v2")
e("v_add_u32 v28, s4, v3")
e("ds_read_b64_tr_b16 v[80:81], v27")
e("ds_read_b64_tr_b16 v[82:83], v27 offset:512")
e("ds_read_b64_tr_b16 v[84:85], v28")
e("ds_read_b64_tr_b16 v[86:87], v28 offset:512")
e("v_and_b32 v29, 31, v1")
e("v_lshrrev_b32 v30, 5, v1")
e("v_lshlrev_b32 v30, 3, v30")
e("v_sub_u32 v29, v29, v30")
e("s_lshl_b32 s4, s3, 4")
e("v_subrev_u32 v29, s4, v29")
e("v_mov_b32 v31, 0x3f80")
e("v_mov_b32 v32, 0x3f800000")
for ct in range(2):
    for jd in range(4):
        e(f"v_cmp_eq_u32 vcc, {2*jd - 32*ct}, v29")
        e(f"v_cmp_eq_u32 s[4:5], {2*jd + 1 - 32*ct}, v29") if -16 <= 2*jd + 1 - 32*ct <= 64 else (e(f"v_mov_b32 v33, {2*jd + 1 - 32*ct}"), e("v_cmp_eq_u32 s[4:5], v33, v29"))
        e("s_nop 1")
        e(f"v_cndmask_b32 v{72+4*ct+jd}, 0, v31, vcc")
        e(f"v_cndmask_b32 v{72+4*ct+jd}, v{72+4*ct+jd}, v32, s[4:5]")
G2ACC = 8
def g2acc(ct, tt): return vr(G2ACC + 16 * (2 * ct + tt), 16)
e("s_waitcnt vmcnt(14) lgkmcnt(0)")
e("v_mov_b32 v5, v25")
e("v_mov_b32 v7, v26")
e("s_nop 1")
for ct in range(2):
    for tt in range(2):
        e(f"v_mfma_f32_32x32x16_bf16 {g2acc(ct,tt)}, {vr(72+4*ct,4)}, {vr(80+4*tt,4)}, 0")
e("s_cmp_eq_u32 s3, 0")
e("s_cbranch_scc0 G1_JOIN")
e("v_cmp_gt_u32 vcc, 32, v1")
for i in range(73, 84): e(f"v_mov_b32 v{i}, 0")
e("v_cndmask_b32 v72, 0, v5, vcc")
e("v_cndmask_b32 v76, 0, v7, vcc")
e("v_mov_b32 v80, 0x3f80")
e("s_nop 1")
for ct in range(2):
    for tt in range(2):
        e(f"v_mfma_f32_32x32x16_bf16 {g2acc(ct,tt)}, {vr(72+4*ct,4)}, v[80:83], {g2acc(ct,tt)}")
e("s_branch G1_JOIN")
lab("G1_B")
e("s_sub_u32 s4, s3, 4")
e("s_lshl_b32 s4, s4, 11")
e("v_add_u32 v76, s4, v2")
e("v_add_u32 v77, s4, v3")
for c in range(7):
    e(f"s_waitcnt vmcnt({6-c+14})")
    barrier()
    if c == 0: stamp(12)
    if c == 6: stamp(13)
    d = RING + 8 * (c & 1)
    for t in range(2):
        e(f"ds_read_b64_tr_b16 {vr(d+4*t,2)}, v{76+t} offset:{8192*c}")
        e(f"ds_read_b64_tr_b16 {vr(d+4*t+2,2)}, v{76+t} offset:{8192*c+512}")
    e("s_waitcnt lgkmcnt(0)")
    for h in range(2):
        for t in range(2):
            x = vr(d + 4 * t + 2 * h, 2)
            first = (c == 0 and h == 0)
            e(f"v_mfma_f32_4x4x4_16b_bf16 {vr(8+8*t,4)}, {x}, {x}, {'0' if first else vr(8+8*t,4)}")
            e(f"v_mfma_f32_4x4x4_16b_bf16 {vr(12+8*t,4)}, v[74:75], {x}, {'0' if first else vr(12+8*t,4)}")
e("v_and_b32 v78, 3, v1")
e("v_cmp_eq_u32 vcc, 1, v78")
e("v_cmp_eq_u32 s[4:5], 2, v78")
e("v_cmp_eq_u32 s[6:7], 3, v78")
e("s_sub_u32 s75, s3, 4")
e("s_lshl_b32 s75, s75, 9")
e(f"s_add_u32 s75, s75, {STX}")
e("v_lshl_add_u32 v79, v1, 3, s75")
e("s_nop 1")
for t in range(2):
    b0 = 8 + 8 * t
    e(f"v_cndmask_b32 v{b0}, v{b0}, v{b0+1}, vcc")
    e(f"v_cndmask_b32 v{b0}, v{b0}, v{b0+2}, s[4:5]")
    e(f"v_cndmask_b32 v{b0}, v{b0}, v{b0+3}, s[6:7]")
e("s_nop 1")
e("v_permlane32_swap_b32 v8, v16")
e("v_permlane32_swap_b32 v12, v20")
e("v_add_f32 v81, v8, v16")
e("v_add_f32 v80, v12, v20")
e("ds_write_b64 v79, v[80:81]")
e("s_waitcnt lgkmcnt(0)")
barrier()
stamp(14)
tile_mfma(0)
stats_consts()
gelu(0, False)
stamp(15)
tile_mfma(1)
stamp(16)
gelu(1, True)
stamp(17)
w2_loads(14, 28)
e("s_waitcnt vmcnt(14)")
lab("G1_JOIN")
e(f"s_mul_i32 s4, s{sG}, 112")
e("s_mul_i32 s5, s3, 14")
e("s_add_u32 s4, s4, s5")
e("s_lshl_b32 s4, s4, 11")
e(f"s_add_u32 s4, s4, {WS_HF}")
e("v_lshl_add_u32 v4, v1, 4, s4")
barrier()
stamp(18)
e("s_cmp_eq_u32 s3, 0")
e("s_cbranch_scc0 S3_WAIT")
e(f"s_lshl_b32 s4, s{sG}, 8")
e(f"s_add_u32 s4, s4, {C_S3*256}")
e("v_mov_b32 v5, s4")
e("v_mov_b32 v7, 1")
e("s_mov_b64 exec, 1")
e(f"buffer_atomic_add v7, v5, {srd(sWS)}, 0 offen sc1")
e("s_mov_b64 exec, -1")
poll(5, 7, 7, 0x53)
lab("S3_WAIT")
barrier()
stamp(19)
stop_here("g1")

NR = 18
def hreg(i):
    s_ = i % NR
    return ar(56 + 4 * s_, 4) if s_ < 14 else vr(72 + 4 * (s_ - 14), 4)
def h_load(i):
    if i % 4 == 0 or i == NR: e(f"s_mov_b32 s4, {4096*(i//4)}")
    e(f"buffer_load_dwordx4 {hreg(i)}, v4, {srd(sWS)}, s4 offen offset:{1024*(i%4)} sc1")
def g2_loop(at_all_issued):
    for ks in range(14):
        issued = min(28, NR + 2 * ks)
        e(f"s_waitcnt vmcnt({issued - 2*ks - 2})")
        for tt in range(2):
            for ct in range(2):
                e(f"v_mfma_f32_32x32x16_bf16 {g2acc(ct,tt)}, {w2reg(ks,ct)}, {hreg(2*ks+tt)}, {g2acc(ct,tt)}")
        for i in (NR + 2 * ks, NR + 2 * ks + 1):
            if i < 28: h_load(i)
        if NR + 2 * ks + 2 == 28: at_all_issued()
e("v_lshlrev_b32 v2, 4, v1")
e("s_and_b32 s5, s3, 3")
e("s_lshl_b32 s5, s5, 14")
e(f"v_add_u32 v2, s5, v2") if HO == 0 else None
e("s_cmp_ge_u32 s3, 4")
e("s_cbranch_scc1 G2_B")
for i in range(NR): h_load(i)
g2_loop(barrier)
stamp(21)
e("s_nop 7")
e("s_nop 3")
for q in range(16): e(f"ds_write_b128 v2, {vr(G2ACC+4*q,4)} offset:{1024*q}")
e("s_waitcnt lgkmcnt(0)")
barrier()
e("s_branch G2_JOIN")
lab("G2_B")
barrier()
for i in range(NR): h_load(i)
e("v_and_b32 v3, 31, v1")
e(f"v_mul_u32_u24 v3, {FIN_ROW}, v3")
e("v_lshrrev_b32 v5, 5, v1")
e("v_lshl_add_u32 v3, v5, 4, v3")
e("s_and_b32 s5, s3, 3")
e(f"s_mul_i32 s5, s5, {FIN_K}")
e(f"s_add_u32 s5, s5, {FIN}")
e("v_add_u32 v3, s5, v3")
barrier()
stamp(20)
for q in range(16): e(f"ds_read_b128 {vr(G2ACC+4*q,4)}, v2 offset:{1024*q}")
e("s_waitcnt lgkmcnt(0)")
g2_loop(lambda: None)
stamp(21)
e("s_nop 7")
e("s_nop 3")
for ct in range(2):
    for tt in range(2):
        for qd in range(4):
            e(f"ds_write_b128 v3, {vr(G2ACC+16*(2*ct+tt)+4*qd,4)} offset:{32*FIN_ROW*tt + 128*ct + 32*qd}")
lab("G2_JOIN")
e("v_lshrrev_b32 v2, 3, v0")
e("v_and_b32 v3, 7, v0")
e(f"v_mul_u32_u24 v5, {FIN_ROW}, v2")
e("v_lshl_add_u32 v5, v3, 5, v5")
e(f"v_add_u32 v5, {FIN}, v5")
e("v_mul_u32_u24 v6, 896, v2")
e("v_lshl_add_u32 v6, v3, 4, v6")
e(f"s_mul_i32 s4, s{sG}, 57344")
e(f"s_lshl_b32 s5, s{sJ}, 7")
e("s_add_u32 s4, s4, s5")
e("v_add_u32 v6, s4, v6")
e("s_waitcnt lgkmcnt(0)")
barrier()
stamp(22)
for k in range(4):
    for h in range(2): e(f"ds_read_b128 {vr(8+8*k+4*h,4)}, v5 offset:{FIN_K*k+16*h}")
e("s_waitcnt lgkmcnt(4)")
for i in range(4): e(f"v_pk_add_f32 {vr(8+2*i,2)}, {vr(8+2*i,2)}, {vr(16+2*i,2)}")
e("s_waitcnt lgkmcnt(0)")
for i in range(4): e(f"v_pk_add_f32 {vr(24+2*i,2)}, {vr(24+2*i,2)}, {vr(32+2*i,2)}")
for i in range(4): e(f"v_pk_add_f32 {vr(8+2*i,2)}, {vr(8+2*i,2)}, {vr(24+2*i,2)}")
for i in range(4): e(f"v_cvt_pk_bf16_f32 v{40+i}, v{8+2*i}, v{9+2*i}")
e(f"buffer_store_dwordx4 v[40:43], v6, {srd(sOUT)}, 0 offen")
lab("FINISH")
if STAMPS:
    e("s_waitcnt vmcnt(0)")
    stamp(23)
    e("v_mov_b32 v2, 0")
    for i in range(NSTAMP): e(f"v_writelane_b32 v2, s{sST+i}, {i}")
    e("s_lshl_b32 s4, s2, 3")
    e("s_add_u32 s4, s4, s3")
    e("s_lshl_b32 s4, s4, 7")
    e(f"s_add_u32 s4, s4, {WS_STAMP}")
    e("v_lshl_add_u32 v3, v1, 2, s4")
    e("s_mov_b32 exec_hi, 0")
    e(f"buffer_store_dword v2, v3, {srd(sWS)}, 0 offen")
lab("EXIT")
e("s_endpgm")
lab("CODE_END")
L.append('.section .rodata,"a"')
L.append(".p2align 6")
L.append(f".amdhsa_kernel {NAME}_kernel")
L.append("  .amdhsa_next_free_vgpr 256")
L.append("  .amdhsa_next_free_sgpr 102")
L.append("  .amdhsa_accum_offset 128")
L.append("  .amdhsa_group_segment_fixed_size 0")
L.append("  .amdhsa_kernarg_size 112")
L.append("  .amdhsa_user_sgpr_count 2")
L.append("  .amdhsa_user_sgpr_kernarg_segment_ptr 1")
L.append("  .amdhsa_system_sgpr_workgroup_id_x 1")
L.append(".end_amdhsa_kernel")
open(OUT, "w").write("\n".join(L) + "\n")
```

```python
import sys
N="sequential_preLN__ssm_conv_h3__mixer_channel_mlp__prompt"
def variants(src):
    s=open(src).read()
    launch=[l for l in s.split('\n') if '@launch' in l][0]
    main=launch if 'kernel=' in launch else launch.replace('@launch ',f'@launch kernel={N}_kernel ')
    def addk(t,name,body,nv=16):
        t=t.replace('.section .rodata,"a"',f'.globl {name}\n.p2align 8\n.type {name},@function\n{name}:\n{body}\n    s_endpgm\n.section .rodata,"a"',1)
        t+=f'''.p2align 6
.amdhsa_kernel {name}
  .amdhsa_next_free_vgpr {nv}
  .amdhsa_next_free_sgpr 64
  .amdhsa_accum_offset {nv}
  .amdhsa_group_segment_fixed_size 0
  .amdhsa_kernarg_size 112
  .amdhsa_user_sgpr_count 2
  .amdhsa_user_sgpr_kernarg_segment_ptr 1
  .amdhsa_system_sgpr_workgroup_id_x 1
.end_amdhsa_kernel
'''
        return t
    return s,launch,main,addk
if __name__=="__main__":
    s,launch,main,addk=variants(sys.argv[1])
    open('e1.s','w').write(s.replace(launch,main))
    body=f'''    s_getpc_b64 s[8:9]
TC0:
    s_sub_u32 s8, s8, TC0-{N}_kernel
    s_subb_u32 s9, s9, 0
    s_mov_b32 s10, CODE_END-{N}_kernel
    s_mov_b32 s11, 0x20000
    v_lshlrev_b32 v1, 7, v0
    buffer_load_dword v2, v1, s[8:11], 0 offen
    s_waitcnt vmcnt(0)'''
    open('e2.s','w').write(addk(s.replace(launch,"; @launch kernel=pre_kernel grid=(256,1,1) block=(256,1,1) lds=0\n"+main),"pre_kernel",body))
    b=["    s_cmp_ge_u32 s2, 256","    s_cbranch_scc1 TI_END"]
    for i,(off,sz) in enumerate([(0,1835008),(8,1835008),(16,1835008),(32,1835008),(56,1605632),(72,1605632)]):
        b+= [f"    s_load_dwordx2 s[{8+4*i}:{9+4*i}], s[0:1], {off}",f"    s_mov_b32 s{10+4*i}, {sz}",f"    s_mov_b32 s{11+4*i}, 0x20000"]
    b+=["    s_lshl_b32 s3, s2, 12","    v_lshl_add_u32 v1, v0, 4, s3","    v_add_u32 v2, 0x100000, v1","    s_waitcnt lgkmcnt(0)"]
    for i in range(6):
        b+=[f"    buffer_load_dwordx4 v[4:7], v1, s[{8+4*i}:{11+4*i}], 0 offen",f"    buffer_load_dwordx4 v[8:11], v2, s[{8+4*i}:{11+4*i}], 0 offen"]
    b+=["    s_waitcnt vmcnt(0)","TI_END:"]
    open('e3.s','w').write(addk(s.replace(launch,"; @launch kernel=pre_kernel grid=(256,1,1) block=(256,1,1) lds=0\n"+main),"pre_kernel","\n".join(b)))
    b=["    s_load_dwordx2 s[8:9], s[0:1], 104","    s_mov_b32 s10, 0x1000000","    s_mov_b32 s11, 0x20000","    v_lshlrev_b32 v1, 16, v0","    v_add_u32 v1, 0x8000, v1","    s_waitcnt lgkmcnt(0)","    buffer_load_dword v2, v1, s[8:11], 0 offen","    s_waitcnt vmcnt(0)"]
    open('e4.s','w').write(addk(s.replace(launch,"; @launch kernel=pre_kernel grid=(256,1,1) block=(256,1,1) lds=0\n"+main),"pre_kernel","\n".join(b)))
    open('e5.s','w').write(addk(s.replace(launch,"; @launch kernel=pre_kernel grid=(256,1,1) block=(256,1,1) lds=0\n"+main),"pre_kernel","    s_nop 0"))
```

```python
import sys
from mkvar import variants, N
s,launch,main,addk=variants(sys.argv[1])
def chain(off,size,base,stride,n=16):
    b=["    s_cmp_ge_u32 s2, 1","    s_cbranch_scc1 CH_END",f"    s_load_dwordx2 s[8:9], s[0:1], {off}",f"    s_mov_b32 s10, {size}","    s_mov_b32 s11, 0x20000",f"    v_mov_b32 v1, {base}","    s_waitcnt lgkmcnt(0)"]
    for i in range(n):
        b+=["    buffer_load_dword v2, v1, s[8:11], 0 offen","    s_waitcnt vmcnt(0)",f"    v_add_u32 v1, {stride}, v1"]
    b+=["CH_END:"]
    return "\n".join(b)
pre="; @launch kernel=pre_kernel grid=(1,1,1) block=(64,1,1) lds=0\n"
open('f1.s','w').write(addk(s.replace(launch,pre+main),"pre_kernel",chain(48,1835008,0,65536)))
open('f2.s','w').write(addk(s.replace(launch,pre+main),"pre_kernel",chain(104,0x10000000,0x4000000,65536)))
open('f3.s','w').write(addk(s.replace(launch,pre+main),"pre_kernel",chain(104,0x10000000,0xFE00000,65536)))
open('f4.s','w').write(addk(s.replace(launch,pre+main),"pre_kernel",chain(48,1835008,0,0)))
open('f5.s','w').write(addk(s.replace(launch,pre+main),"pre_kernel",chain(104,0x10000000,0x1000000,0x800000)))
```
